```python
import torch

def _softmax(x, axis=-1):
    return torch.softmax(x, dim=axis)
def _gelu(x):
    return torch.nn.functional.gelu(x, approximate="tanh")
def _silu(x):
    return torch.nn.functional.silu(x)
def _sigmoid(x):
    return torch.sigmoid(x)
def _layernorm(x, axis=-1, eps=1e-5):
    m = x.mean(dim=axis, keepdim=True)
    v = x.var(dim=axis, keepdim=True, unbiased=False)
    return (x - m) / torch.sqrt(v + eps)
def _scatter_add(tgt, idx, src, axis=0):
    return tgt.clone().index_add_(axis, idx, src)
def _segment_sum(src, seg, n):
    out = torch.zeros((n,) + src.shape[1:], dtype=src.dtype)
    return out.index_add_(0, seg, src)
def _pad(x, pw):
    flat = tuple(v for pair in reversed(pw) for v in pair)
    return torch.nn.functional.pad(x, flat)

kernel_name = 'standalone__mha_block_cached__near_ridge'

def setup_inputs():

    _w = (lambda a: (lambda t: t.to(torch.bfloat16) if t.is_floating_point() else t)(torch.as_tensor(a)))
    B, Sq, D = 32, 32, 576
    H, Sk, Dh = 32, 32, 128
    return {
        "x": _w((lambda *s: torch.randn(*s, dtype=torch.bfloat16) * 0.8)(B, Sq, D)),
        "k_cache": _w((lambda *s: torch.randn(*s, dtype=torch.bfloat16) * 0.8)(B, H, Sk, Dh)),
        "v_cache": _w((lambda *s: torch.randn(*s, dtype=torch.bfloat16) * 0.05)(B, H, Sk, Dh)),
        "wq": _w((lambda *s: torch.randn(*s, dtype=torch.bfloat16) * 0.8)(D, H * Dh) * (D ** -0.5)),
        "wo": _w((lambda *s: torch.randn(*s, dtype=torch.bfloat16) * 0.05)(H * Dh, D) * ((H * Dh) ** -0.5)),
    }

def reference(x, k_cache, v_cache, wq, wo):
    B, Sq, D = x.shape
    H, Dh = 32, 128
    q = (lambda x, *d: x.permute(*d))((x @ wq).reshape(B, Sq, H, Dh), 0, 2, 1, 3)
    scores = torch.einsum("bhqd,bhkd->bhqk", q, k_cache) * (Dh ** -0.5)
    p = _softmax(scores, axis=-1)
    o = torch.einsum("bhqk,bhkd->bhqd", p, v_cache)
    return (lambda x, *d: x.permute(*d))(o, 0, 2, 1, 3).reshape(B, Sq, H * Dh) @ wo
```

```python
KNAME = "standalone__mha_block_cached__near_ridge_kernel"

HEADER_COMMENTS = """; generated file - see gen/*.py
"""

class Asm:
    def __init__(self):
        self.lines = []
        self.uid = 0
    def __call__(self, s=""):
        for ln in s.split("\n"):
            ln = ln.rstrip()
            if ln.strip() == "":
                continue
            t = ln.strip()
            if t.endswith(":") or t.startswith("."):
                self.lines.append(t)
            else:
                self.lines.append("    " + t)
    def label(self, base="L"):
        self.uid += 1
        return "%s_%d" % (base, self.uid)
    def text(self):
        return "\n".join(self.lines) + "\n"

def kernel_begin(a, name):
    a(".text")
    a(".globl %s" % name)
    a(".p2align 8")
    a(".type %s,@function" % name)
    a("%s:" % name)

def kernel_desc(a, name, vgpr=256, sgpr=102, accum=256, extra=()):
    a('.section .rodata,"a"')
    a(".p2align 6")
    a(".amdhsa_kernel %s" % name)
    a("  .amdhsa_next_free_vgpr %d" % vgpr)
    a("  .amdhsa_next_free_sgpr %d" % sgpr)
    a("  .amdhsa_accum_offset %d" % accum)
    a("  .amdhsa_group_segment_fixed_size 0")
    a("  .amdhsa_kernarg_size 64")
    a("  .amdhsa_user_sgpr_count 2")
    a("  .amdhsa_user_sgpr_kernarg_segment_ptr 1")
    a("  .amdhsa_system_sgpr_workgroup_id_x 1")
    for e in extra:
        a("  " + e)
    a(".end_amdhsa_kernel")

def file_header(launches):
    s = "; generated by hand-written python generator (gen/)\n"
    if len(launches) == 1 and launches[0][0] == KNAME:
        k, g, b, l = launches[0]
        s += "; @launch grid=(%d,%d,%d) block=(%d,%d,%d) lds=%d\n" % (*g, *b, l)
    else:
        for k, g, b, l in launches:
            s += "; @launch kernel=%s grid=(%d,%d,%d) block=(%d,%d,%d) lds=%d\n" % (k, *g, *b, l)
    s += '.amdgcn_target "amdgcn-amd-amdhsa--gfx950"\n'
    return s

KA_X, KA_K, KA_V, KA_WQ, KA_WO, KA_OUT, KA_DBG, KA_WS = 0, 8, 16, 24, 32, 40, 48, 56

def srd(a, d, base, nbytes):
    a("s_mov_b32 s%d, s%d" % (d, base))
    a("s_and_b32 s%d, s%d, 0xffff" % (d + 1, base + 1))
    a("s_mov_b32 s%d, 0x%x" % (d + 2, nbytes))
    a("s_mov_b32 s%d, 0x00020000" % (d + 3))
```

```python
from asmgen import *

O_WS_OFF = 0

def gen_k1(a, name, stamps=False):
    kernel_begin(a, name)
    Lend = a.label("L_k1_end")
    a("s_cmp_ge_u32 s2, 256")
    a("s_cbranch_scc1 %s" % Lend)
    if stamps: a("s_memrealtime s[80:81]")
    a("s_load_dwordx4 s[4:7], s[0:1], 0")
    a("s_load_dwordx4 s[8:11], s[0:1], 16")
    a("s_load_dwordx2 s[14:15], s[0:1], 56")
    a("v_lshrrev_b32 v1, 6, v0")
    a("v_and_b32 v2, 63, v0")
    a("s_nop 0")
    a("v_readfirstlane_b32 s16, v1")
    a("s_and_b32 s17, s2, 7"); a("s_lshl_b32 s17, s17, 2"); a("s_lshr_b32 s18, s2, 3")
    a("s_and_b32 s19, s18, 3"); a("s_add_u32 s17, s17, s19")
    a("s_lshr_b32 s18, s18, 2")
    a("s_waitcnt lgkmcnt(0)")
    srd(a, 20, 4, 1179648)
    srd(a, 24, 6, 8388608)
    srd(a, 28, 8, 8388608)
    srd(a, 32, 10, 4718592)
    srd(a, 36, 14, 268435456)
    vDW, vDX0, vDX1, vDK, vDV = 3, 4, 5, 6, 10
    T0, T1, T2 = 11, 12, 13
    a("v_lshrrev_b32 v%d, 4, v2" % T0)
    a("v_and_b32 v%d, 15, v2" % T1)
    a("v_lshlrev_b32 v%d, 2, v%d" % (T2, T0))
    a("v_xor_b32 v%d, v%d, v%d" % (T1, T1, T2))
    a("v_lshlrev_b32 v%d, 4, v%d" % (T1, T1))
    a("v_lshlrev_b32 v%d, 13, v%d" % (vDW, T0))
    a("v_add_u32 v%d, v%d, v%d" % (vDW, vDW, T1))
    a("s_lshl_b32 s44, s16, 17"); a("s_lshl_b32 s45, s17, 8"); a("s_add_u32 s44, s44, s45")
    a("v_add_u32 v%d, s44, v%d" % (vDW, vDW))
    a("s_lshl_b32 s46, s18, 2"); a("s_add_u32 s46, s46, s16")
    a("s_lshl_b32 s47, s46, 5"); a("s_add_u32 s47, s47, s17")
    a("s_lshl_b32 s47, s47, 13")
    a("v_lshlrev_b32 v%d, 8, v%d" % (vDV, T0))
    a("v_add_u32 v%d, v%d, v%d" % (vDV, vDV, T1))
    a("v_add_u32 v%d, s47, v%d" % (vDV, vDV))
    a("v_and_b32 v%d, 15, v2" % T1)
    a("v_xor_b32 v%d, v%d, v%d" % (T1, T1, T0))
    a("v_lshlrev_b32 v%d, 4, v%d" % (T1, T1))
    for i in range(4):
        a("v_xor_b32 v%d, %d, v%d" % (T2, i << 6, T1))
        a("v_lshlrev_b32 v%d, 8, v%d" % (vDK + i, T0))
        a("v_add_u32 v%d, v%d, v%d" % (vDK + i, vDK + i, T2))
        a("v_add_u32 v%d, s47, v%d" % (vDK + i, vDK + i))
    a("v_lshrrev_b32 v%d, 3, v2" % T0)
    a("v_lshrrev_b32 v%d, 1, v%d" % (T2, T0))
    a("v_and_b32 v%d, 7, v2" % T1)
    a("v_xor_b32 v%d, v%d, v%d" % (T1, T1, T2))
    a("v_lshlrev_b32 v%d, 4, v%d" % (T1, T1))
    a("s_movk_i32 s45, 1152")
    a("v_mul_lo_u32 v%d, v%d, s45" % (T0, T0))
    a("s_lshl_b32 s44, s46, 5"); a("s_mul_i32 s44, s44, 1152")
    a("v_add_u32 v%d, s44, v%d" % (T0, T0))
    a("v_add_u32 v%d, v%d, v%d" % (vDX0, T0, T1))
    a("v_xor_b32 v%d, 64, v%d" % (T1, T1))
    a("v_add_u32 v%d, v%d, v%d" % (vDX1, T0, T1))
    a("s_lshl_b32 s48, s16, 12")
    a("s_lshl_b32 s49, s16, 13")

    def dma(vreg, srdn, soff, m0base_sreg, m0imm):
        a("s_add_u32 m0, s%d, %d" % (m0base_sreg, m0imm))
        a("s_mov_b32 s50, %d" % soff)
        a("buffer_load_dwordx4 v%d, s[%d:%d], s50 offen lds" % (vreg, srdn, srdn + 3))
    def issue_stage(c):
        slot = (c % 5) * 32768
        if c <= 8:
            for i in range(4):
                dma(vDW, 32, (c * 64 + i * 4) * 8192, 48, slot + i * 1024)
            for i in range(4):
                dma(vDX0 if i % 2 == 0 else vDX1, 20, i * 8 * 1152 + c * 128, 48, slot + 16384 + i * 1024)
        elif c == 9:
            for i in range(8):
                dma(vDK + (i & 3), 24, i * 1024, 49, slot + i * 1024)
        else:
            for i in range(8):
                dma(vDV, 28, i * 1024, 49, slot + i * 1024)
    for c in range(5):
        issue_stage(c)
    vA, vX, vV, vK = 14, 18, 22, 26
    HI, RR, LO = 27, 28, 29
    a("v_lshrrev_b32 v%d, 5, v2" % HI)
    a("v_bfe_u32 v%d, v2, 2, 2" % RR)
    a("v_bfe_u32 v%d, v2, 4, 1" % T0); a("v_lshlrev_b32 v%d, 5, v%d" % (LO, T0))
    a("v_and_b32 v%d, 1, v2" % T0); a("v_lshlrev_b32 v%d, 4, v%d" % (T0, T0)); a("v_add_u32 v%d, v%d, v%d" % (LO, LO, T0))
    a("v_bfe_u32 v%d, v2, 1, 1" % T0); a("v_lshlrev_b32 v%d, 3, v%d" % (T0, T0)); a("v_add_u32 v%d, v%d, v%d" % (LO, LO, T0))
    for dt in range(4):
        a("v_xor_b32 v%d, %d, v%d" % (T0, dt, RR)); a("v_lshlrev_b32 v%d, 6, v%d" % (T0, T0))
        a("v_add_u32 v%d, v%d, v%d" % (T0, T0, LO))
        a("v_lshlrev_b32 v%d, 3, v%d" % (T1, HI)); a("v_add_u32 v%d, v%d, v%d" % (T1, T1, RR)); a("v_lshlrev_b32 v%d, 8, v%d" % (T1, T1))
        a("v_add_u32 v%d, v%d, v%d" % (vA + dt, T0, T1))
        a("v_lshlrev_b32 v%d, 2, v%d" % (T1, HI)); a("v_add_u32 v%d, v%d, v%d" % (T1, T1, RR)); a("v_lshlrev_b32 v%d, 8, v%d" % (T1, T1))
        a("v_add_u32 v%d, v%d, v%d" % (vV + dt, T0, T1))
        a("v_add_u32 v%d, s49, v%d" % (vV + dt, vV + dt))
    a("v_and_b32 v%d, 31, v2" % T0)
    a("v_bfe_u32 v%d, v2, 1, 3" % T1); a("v_xor_b32 v%d, v%d, v%d" % (T1, T1, HI)); a("v_lshlrev_b32 v%d, 4, v%d" % (T1, T1))
    a("v_lshlrev_b32 v%d, 7, v%d" % (T0, T0))
    a("s_add_u32 s51, s48, 16384")
    for s in range(4):
        a("v_xor_b32 v%d, %d, v%d" % (T2, 32 * s, T1))
        a("v_add_u32 v%d, v%d, v%d" % (T2, T2, T0))
        a("v_add_u32 v%d, s51, v%d" % (vX + s, T2))
    a("v_and_b32 v%d, 15, v2" % T1); a("v_xor_b32 v%d, v%d, v%d" % (T1, T1, HI)); a("v_lshlrev_b32 v%d, 4, v%d" % (vK + 4, T1))
    a("v_and_b32 v%d, 31, v2" % T0); a("v_lshlrev_b32 v%d, 8, v%d" % (T0, T0))
    a("s_add_u32 s51, s49, %d" % (4 * 32768))
    a("v_add_u32 v%d, s51, v%d" % (vK, T0))
    vKx = vK + 4
    ACC = 64
    AF = 128
    BF = 160
    for i in range(64):
        a("v_mov_b32 v%d, 0" % (ACC + i))
    cur_slot_add = [0]
    def set_slot(slot_bytes):
        d = slot_bytes - cur_slot_add[0]
        if d != 0:
            for i in range(4):
                a("v_add_u32 v%d, %d, v%d" % (vA + i, d & 0xffffffff, vA + i))
                a("v_add_u32 v%d, %d, v%d" % (vX + i, d & 0xffffffff, vX + i))
            cur_slot_add[0] = slot_bytes
    def reads(n):
        c, s = divmod(n, 4)
        st = n & 1
        L = []
        L.append("ds_read_b128 v[%d:%d], v%d" % (BF + 4 * st, BF + 4 * st + 3, vX + s))
        for dt in range(4):
            for p in range(2):
                r0 = AF + 16 * st + 4 * dt + 2 * p
                L.append("ds_read_b64_tr_b16 v[%d:%d], v%d offset:%d" % (r0, r0 + 1, vA + dt, (16 * s + 4 * p) * 256))
        return L
    def top_of_stage(c):
        if c == 0: a("s_waitcnt vmcnt(32)")
        elif c <= 7: a("s_waitcnt vmcnt(24)")
        else: a("s_waitcnt vmcnt(16)")
        a("s_barrier")
        if 1 <= c <= 6:
            issue_stage(c + 4)
        set_slot((c % 5) * 32768)
    top_of_stage(0)
    if stamps: a("s_memrealtime s[82:83]")
    for r_ in reads(0): a(r_)
    for n in range(36):
        st = n & 1
        a("s_waitcnt lgkmcnt(0)")
        nxt = []
        if n + 1 < 36:
            if (n + 1) % 4 == 0:
                top_of_stage((n + 1) // 4)
            nxt = reads(n + 1)
        for dt in range(4):
            a("v_mfma_f32_32x32x16_bf16 v[%d:%d], v[%d:%d], v[%d:%d], v[%d:%d]" % (
                ACC + 16 * dt, ACC + 16 * dt + 15, AF + 16 * st + 4 * dt, AF + 16 * st + 4 * dt + 3,
                BF + 4 * st, BF + 4 * st + 3, ACC + 16 * dt, ACC + 16 * dt + 15))
            for r_ in nxt[3 * dt: 3 * dt + 3] if dt < 3 else nxt[9:]:
                a(r_)
    if stamps: a("s_memrealtime s[84:85]")
    QF, KF = 128, 168
    a("s_waitcnt vmcnt(8)")
    for t in range(8):
        a("v_xor_b32 v%d, %d, v%d" % (T0, 32 * t, vKx))
        a("v_add_u32 v%d, v%d, v%d" % (T0, T0, vK))
        a("ds_read_b128 v[%d:%d], v%d" % (KF + 4 * t, KF + 4 * t + 3, T0))
    a("s_nop 7"); a("s_nop 3")
    for t in range(8):
        dt, u = divmod(t, 2)
        for z in range(4):
            a("v_cvt_pk_bf16_f32 v%d, v%d, v%d" % (QF + 4 * t + z, ACC + 16 * dt + 8 * u + 2 * z, ACC + 16 * dt + 8 * u + 2 * z + 1))
    S = 200
    for i in range(16): a("v_mov_b32 v%d, 0" % (S + i))
    a("s_waitcnt lgkmcnt(0)")
    a("s_nop 1")
    for t in range(8):
        a("v_mfma_f32_32x32x16_bf16 v[%d:%d], v[%d:%d], v[%d:%d], v[%d:%d]" % (
            S, S + 15, KF + 4 * t, KF + 4 * t + 3, QF + 4 * t, QF + 4 * t + 3, S, S + 15))
    VF = 64
    a("s_waitcnt vmcnt(0)")
    k = 0
    for dt in range(4):
        for s in range(2):
            for p in range(2):
                r0 = VF + 8 * dt + 4 * s + 2 * p
                a("ds_read_b64_tr_b16 v[%d:%d], v%d offset:%d" % (r0, r0 + 1, vV + dt, (16 * s + 8 * p) * 256))
                k += 1
                if k == 12: a("s_waitcnt lgkmcnt(4)")
    O = 216
    Oregs = [96, 112, 168, 184]
    a("s_nop 7"); a("s_nop 7")
    M, M2, SUM, SUM2 = T0, T1, T2, 19
    a("v_max_f32 v%d, v%d, v%d" % (M, S, S + 1))
    for i in range(2, 16, 2):
        a("v_max3_f32 v%d, v%d, v%d, v%d" % (M, M, S + i, S + i + 1))
    a("v_mov_b32 v%d, v%d" % (M2, M))
    a("s_nop 1")
    a("v_permlane32_swap_b32 v%d, v%d" % (M, M2))
    a("s_nop 1")
    a("v_max_f32 v%d, v%d, v%d" % (M, M, M2))
    CEXP = 0.08838834764831845 * 1.4426950408889634
    import struct
    cbits = struct.unpack("<I", struct.pack("<f", CEXP))[0]
    a("s_mov_b32 s52, 0x%x" % cbits)
    a("v_mul_f32 v%d, s52, v%d" % (M, M))
    for i in range(16):
        a("v_fma_f32 v%d, v%d, s52, -v%d" % (S + i, S + i, M))
    for i in range(16):
        a("v_exp_f32 v%d, v%d" % (S + i, S + i))
    for dt in range(4):
        for i in range(16): a("v_mov_b32 v%d, 0" % (Oregs[dt] + i))
    a("v_add_f32 v%d, v%d, v%d" % (SUM, S, S + 1))
    for i in range(2, 16):
        a("v_add_f32 v%d, v%d, v%d" % (SUM, SUM, S + i))
    a("v_mov_b32 v%d, v%d" % (SUM2, SUM))
    a("s_nop 1")
    a("v_permlane32_swap_b32 v%d, v%d" % (SUM, SUM2))
    a("s_nop 1")
    a("v_add_f32 v%d, v%d, v%d" % (SUM, SUM, SUM2))
    a("v_rcp_f32 v%d, v%d" % (SUM, SUM))
    a("s_nop 1")
    for i in range(16):
        a("v_mul_f32 v%d, v%d, v%d" % (S + i, S + i, SUM))
    PF = 128
    for s in range(2):
        for z in range(4):
            a("v_cvt_pk_bf16_f32 v%d, v%d, v%d" % (PF + 4 * s + z, S + 8 * s + 2 * z, S + 8 * s + 2 * z + 1))
    a("s_waitcnt lgkmcnt(0)")
    a("s_nop 1")
    for s in range(2):
        for dt in range(4):
            a("v_mfma_f32_32x32x16_bf16 v[%d:%d], v[%d:%d], v[%d:%d], v[%d:%d]" % (
                Oregs[dt], Oregs[dt] + 15, VF + 8 * dt + 4 * s, VF + 8 * dt + 4 * s + 3,
                PF + 4 * s, PF + 4 * s + 3, Oregs[dt], Oregs[dt] + 15))
    a("s_nop 7"); a("s_nop 7")
    OUTR = 136
    a("v_lshlrev_b32 v%d, 4, v2" % T0)
    a("v_add_u32 v%d, s47, v%d" % (T0, T0))
    for t in range(8):
        dt, u = divmod(t, 2)
        for z in range(4):
            a("v_cvt_pk_bf16_f32 v%d, v%d, v%d" % (OUTR + 4 * t + z, Oregs[dt] + 8 * u + 2 * z, Oregs[dt] + 8 * u + 2 * z + 1))
    for t in range(8):
        a("buffer_store_dwordx4 v[%d:%d], v%d, s[36:39], 0 offen offset:%d" % (OUTR + 4 * t, OUTR + 4 * t + 3, T0, 0) if False else
          "buffer_store_dwordx4 v[%d:%d], v%d, s[36:39], 0 offen" % (OUTR + 4 * t, OUTR + 4 * t + 3, T0))
        if t < 7: a("v_add_u32 v%d, 1024, v%d" % (T0, T0))
    if stamps:
        a("s_memrealtime s[86:87]")
        a("s_waitcnt vmcnt(0)")
        a("s_memrealtime s[88:89]")
        a("s_waitcnt lgkmcnt(0)")
        a("s_lshl_b32 s53, s2, 2"); a("s_add_u32 s53, s53, s16"); a("s_lshl_b32 s53, s53, 5"); a("s_add_u32 s53, s53, 0x1000000")
        a("v_mov_b32 v8, s53")
        a("v_cmp_eq_u32 vcc, 0, v2")
        a("s_and_saveexec_b64 s[54:55], vcc")
        for i in range(5):
            a("v_mov_b32 v9, s%d" % (80 + 2 * i))
            a("buffer_store_dword v9, v8, s[36:39], 0 offen offset:%d" % (4 * i))
    a("%s:" % Lend)
    a("s_endpgm")
```

```python
from asmgen import *

def gen_k2(a, name):
    kernel_begin(a, name)
    Lend = a.label("L_k2_end")
    a("s_cmp_ge_u32 s2, 144")
    a("s_cbranch_scc1 %s" % Lend)
    a("s_load_dwordx4 s[4:7], s[0:1], 32")
    a("s_load_dwordx2 s[14:15], s[0:1], 56")
    a("v_lshrrev_b32 v1, 6, v0")
    a("v_and_b32 v2, 63, v0")
    a("s_nop 0")
    a("v_readfirstlane_b32 s16, v1")
    a("s_and_b32 s18, s2, 7"); a("s_lshr_b32 s17, s2, 3")
    a("s_waitcnt lgkmcnt(0)")
    srd(a, 20, 4, 4718592)
    srd(a, 24, 6, 1179648)
    srd(a, 36, 14, 268435456)
    T0, T1, T2 = 11, 12, 13
    vDW, vO, vA = 3, 4, 5
    a("s_movk_i32 s45, 1152")
    a("v_lshrrev_b32 v%d, 2, v2" % T0); a("v_mul_lo_u32 v%d, v%d, s45" % (T0, T0))
    a("v_and_b32 v%d, 3, v2" % T1); a("v_lshlrev_b32 v%d, 4, v%d" % (T1, T1))
    a("v_add_u32 v%d, v%d, v%d" % (vDW, T0, T1))
    a("s_mul_i32 s44, s16, %d" % (32 * 1152)); a("s_lshl_b32 s46, s17, 6"); a("s_add_u32 s44, s44, s46")
    a("v_add_u32 v%d, s44, v%d" % (vDW, vDW))
    a("s_lshl_b32 s46, s18, 2"); a("s_add_u32 s46, s46, s16"); a("s_lshl_b32 s47, s46, 18")
    a("v_lshlrev_b32 v%d, 4, v2" % vO); a("v_add_u32 v%d, s47, v%d" % (vO, vO))
    a("v_lshrrev_b32 v%d, 5, v2" % T0); a("v_lshlrev_b32 v%d, 3, v%d" % (T0, T0))
    a("v_bfe_u32 v%d, v2, 2, 2" % T1); a("v_add_u32 v%d, v%d, v%d" % (T0, T0, T1)); a("v_lshlrev_b32 v%d, 6, v%d" % (vA, T0))
    a("v_bfe_u32 v%d, v2, 4, 1" % T0); a("v_lshlrev_b32 v%d, 5, v%d" % (T0, T0)); a("v_add_u32 v%d, v%d, v%d" % (vA, vA, T0))
    a("v_and_b32 v%d, 1, v2" % T0); a("v_lshlrev_b32 v%d, 4, v%d" % (T0, T0)); a("v_add_u32 v%d, v%d, v%d" % (vA, vA, T0))
    a("v_bfe_u32 v%d, v2, 1, 1" % T0); a("v_lshlrev_b32 v%d, 3, v%d" % (T0, T0)); a("v_add_u32 v%d, v%d, v%d" % (vA, vA, T0))
    a("s_lshl_b32 s48, s16, 11")
    NS = 6
    NSL = 6
    OB = 64
    NO = 5
    ACC = 16
    AF = 32
    for i in range(16): a("v_mov_b32 v%d, 0" % (ACC + i))
    def issue(c):
        slot = (c % NSL) * 8192
        for i in range(2):
            a("s_add_u32 m0, s48, %d" % (slot + i * 1024))
            a("s_mov_b32 s50, %d" % ((c * 128 + i * 16) * 1152))
            a("buffer_load_dwordx4 v%d, s[20:23], s50 offen lds" % vDW)
        a("s_mov_b32 s50, %d" % (c * 8192))
        for t in range(8):
            r0 = OB + (c % NO) * 32 + 4 * t
            if t == 4: a("s_mov_b32 s50, %d" % (c * 8192 + 4096))
            a("buffer_load_dwordx4 v[%d:%d], v%d, s[36:39], s50 offen offset:%d" % (r0, r0 + 3, vO, (t % 4) * 1024))
    for c in range(4): issue(c)
    def reads(c, s):
        st = s & 1
        return ["ds_read_b64_tr_b16 v[%d:%d], v%d offset:%d" % (AF + 4 * st + 2 * p, AF + 4 * st + 2 * p + 1, vA, (c % NSL) * 8192 + (16 * s + 4 * p) * 64) for p in range(2)]
    for c in range(32):
        rem = min(3, 31 - c)
        a("s_waitcnt vmcnt(%d) lgkmcnt(0)" % (10 * rem))
        a("s_barrier")
        if c + 4 < 32: issue(c + 4)
        for r_ in reads(c, 0): a(r_)
        for s in range(8):
            st = s & 1
            if s + 1 < 8:
                for r_ in reads(c, s + 1): a(r_)
                a("s_waitcnt lgkmcnt(2)")
            else:
                a("s_waitcnt lgkmcnt(0)")
            ob = OB + (c % NO) * 32 + 4 * s
            a("v_mfma_f32_32x32x16_bf16 v[%d:%d], v[%d:%d], v[%d:%d], v[%d:%d]" % (ACC, ACC + 15, AF + 4 * st, AF + 4 * st + 3, ob, ob + 3, ACC, ACC + 15))
    a("s_nop 7"); a("s_nop 7")
    for u in range(2):
        for z in range(4):
            a("v_cvt_pk_bf16_f32 v%d, v%d, v%d" % (40 + 4 * u + z, ACC + 8 * u + 2 * z, ACC + 8 * u + 2 * z + 1))
    a("v_and_b32 v%d, 31, v2" % T0); a("v_mul_lo_u32 v%d, v%d, s45" % (T0, T0))
    a("v_lshrrev_b32 v%d, 5, v2" % T1); a("v_lshlrev_b32 v%d, 4, v%d" % (T1, T1)); a("v_add_u32 v%d, v%d, v%d" % (T0, T0, T1))
    a("s_mul_i32 s44, s46, %d" % (32 * 1152)); a("s_lshl_b32 s43, s17, 6"); a("s_add_u32 s44, s44, s43")
    a("v_add_u32 v%d, s44, v%d" % (T0, T0))
    a("buffer_store_dwordx4 v[40:43], v%d, s[24:27], 0 offen" % T0)
    a("buffer_store_dwordx4 v[44:47], v%d, s[24:27], 0 offen offset:32" % T0)
    a("%s:" % Lend)
    a("s_endpgm")
```

```python
import sys
sys.path.insert(0, "gen")
from asmgen import *
from k1 import gen_k1
from k2_simple import gen_k2
out = sys.argv[1]
stamps = len(sys.argv) > 2 and sys.argv[2] == "stamps"
a = Asm()
gen_k1(a, "attn_kernel", stamps)
gen_k2(a, "proj_kernel")
kernel_desc(a, "attn_kernel", vgpr=256, sgpr=102, accum=256)
kernel_desc(a, "proj_kernel", vgpr=256, sgpr=102, accum=256)
hdr = file_header([("attn_kernel", (256,1,1), (256,1,1), 163840), ("proj_kernel", (144,1,1), (256,1,1), 49152)])
open(out, "w").write(hdr + a.text())
```
